```python
import torch

def _softmax(x, axis=-1):
    return torch.softmax(x, dim=axis)

def _gelu(x):
    return torch.nn.functional.gelu(x, approximate='tanh')

def _silu(x):
    return torch.nn.functional.silu(x)

def _sigmoid(x):
    return torch.sigmoid(x)

def _layernorm(x, axis=-1, eps=1e-05):
    m = x.mean(dim=axis, keepdim=True)
    v = x.var(dim=axis, keepdim=True, unbiased=False)
    return (x - m) / torch.sqrt(v + eps)

def _scatter_add(tgt, idx, src, axis=0):
    return tgt.clone().index_add_(axis, idx, src)

def _segment_sum(src, seg, n):
    out = torch.zeros((n,) + src.shape[1:], dtype=src.dtype)
    return out.index_add_(0, seg, src)

def _pad(x, pw):
    flat = tuple((v for pair in reversed(pw) for v in pair))
    return torch.nn.functional.pad(x, flat)
kernel_name = 'interleave_layers__linear_attn_block__mixer_gmlp__prompt'

def setup_inputs():

    _w = lambda a: (lambda t: t.to(torch.bfloat16) if t.is_floating_point() else t)(torch.as_tensor(a))

    def _A_setup():
        B, S, D = (1, 2048, 1024)
        return {'x': _w((lambda *s: torch.randn(*s, dtype=torch.bfloat16) * 0.05)(B, S, D)), 'wqkv': _w((lambda *s: torch.randn(*s, dtype=torch.bfloat16) * 0.05)(D, 3 * D)), 'wo': _w((lambda *s: torch.randn(*s, dtype=torch.bfloat16) * 0.05)(D, D))}
    _A_in = _A_setup()

    def _B_setup():
        B, S, D, F = (1, 2048, 1024, 3584)
        Fh = F // 2
        return {'x': _w((lambda *s: torch.randn(*s, dtype=torch.bfloat16) * 0.05)(B, S, D)), 'w_in': _w((lambda *s: torch.randn(*s, dtype=torch.bfloat16) * 0.2)(D, 2 * Fh)), 'w_sp': _w(0.01 * (lambda *s: torch.randn(*s, dtype=torch.bfloat16) * 0.2)(S, S)), 'b_sp': _w(1.0 + 0.01 * (lambda *s: torch.randn(*s, dtype=torch.bfloat16) * 0.05)(S)), 'w_out': _w((lambda *s: torch.randn(*s, dtype=torch.bfloat16) * 0.05)(Fh, D))}
    _B_in = _B_setup()
    return {'A_x': _A_in['x'], 'A_wqkv': _A_in['wqkv'], 'A_wo': _A_in['wo'], 'B_x': _B_in['x'], 'B_w_in': _B_in['w_in'], 'B_w_sp': _B_in['w_sp'], 'B_b_sp': _B_in['b_sp'], 'B_w_out': _B_in['w_out']}

def reference(A_x, A_wqkv, A_wo, B_x, B_w_in, B_w_sp, B_b_sp, B_w_out):

    def _A_ref(x, wqkv, wo):
        B, S, D = x.shape
        H = 32
        Dh = D // H
        qkv = (lambda x, *d: x.permute(*d))((x @ wqkv).reshape(B, S, 3, H, Dh), 2, 0, 3, 1, 4)
        q, k, v = (qkv[0], qkv[1], qkv[2])
        phi = lambda t: torch.where(t > 0, t + 1, torch.exp(t)) + 1e-06
        pq, pk = (phi(q), phi(k))
        kv = torch.einsum('bhsd,bhse->bhde', pk, v)
        z = torch.einsum('bhsd->bhd', pk)
        num = torch.einsum('bhqd,bhde->bhqe', pq, kv)
        den = torch.einsum('bhqd,bhd->bhq', pq, z)[..., None] + 1e-06
        o = num / den
        return (lambda x, *d: x.permute(*d))(o, 0, 2, 1, 3).reshape(B, S, D) @ wo

    def _B_ref(x, w_in, w_sp, b_sp, w_out):
        B, S, D = x.shape
        F = w_in.shape[-1]
        Fh = F // 2
        z = _gelu(torch.einsum('bsd,df->bsf', x, w_in))
        z1 = z[..., :Fh].clone()
        z2 = _layernorm(z[..., Fh:], axis=-1)
        g = torch.einsum('ts,bsf->btf', w_sp, z2) + b_sp[None, :, None]
        return torch.einsum('bsf,fd->bsd', z1 * g, w_out)
    x = A_x
    x = x + _A_ref(_layernorm(x, axis=-1), A_wqkv, A_wo)
    x = x + _B_ref(_layernorm(x, axis=-1), B_w_in, B_w_sp, B_b_sp, B_w_out)
    x = x + _A_ref(_layernorm(x, axis=-1), A_wqkv, A_wo)
    x = x + _B_ref(_layernorm(x, axis=-1), B_w_in, B_w_sp, B_b_sp, B_w_out)
    return x
```

```python
import re

TRANS = ("v_exp_f32", "v_log_f32", "v_rcp_f32", "v_rsq_f32", "v_sqrt_f32", "v_sin_f32", "v_cos_f32")
_REG = re.compile(r"^-?\|?([vas])(\d+)\|?$")
_RNG = re.compile(r"^-?([vas])\[(\d+):(\d+)\]$")


def regs_of(op):
    op = op.strip()
    if op.startswith("abs(") or op.startswith("-abs("):
        op = op[op.index("(") + 1:-1]
    m = _REG.match(op)
    if m:
        return {(m.group(1), int(m.group(2)))}
    m = _RNG.match(op)
    if m:
        return {(m.group(1), i) for i in range(int(m.group(2)), int(m.group(3)) + 1)}
    if op in ("vcc", "vcc_lo", "vcc_hi"):
        return {("vcc", 0)}
    if op in ("exec", "exec_lo", "exec_hi"):
        return {("exec", 0)}
    if op == "m0":
        return {("m0", 0)}
    return set()


class I:
    __slots__ = ("t", "kind", "rd", "wr", "tag", "arg", "mn", "srcC", "srcAB", "data")

    def __init__(s, t, tag=None, kind=None, arg=None):
        s.t = t; s.tag = tag; s.arg = arg
        s.rd = set(); s.wr = set(); s.srcC = set(); s.srcAB = set(); s.data = set()
        s.mn = ""
        if kind:
            s.kind = kind
            return
        parts = t.split(None, 1)
        mn = parts[0]; s.mn = mn
        rest = parts[1] if len(parts) > 1 else ""
        rest = rest.split(";")[0]
        toks = [x.strip() for x in rest.split(",")] if rest.strip() else []
        ops = []
        mods = ""
        depth = 0
        for k, x in enumerate(toks):
            if mods:
                mods += "," + x
                continue
            sp = x.split(None, 1)
            ops.append(sp[0] if sp else "")
            if len(sp) > 1:
                mods = sp[1]
        R = [regs_of(o) for o in ops]
        allr = set().union(*R) if R else set()
        if mn.startswith("v_mfma"):
            s.kind = "mfma"; s.wr = R[0]; s.srcAB = R[1] | R[2]; s.srcC = R[3]; s.rd = s.srcAB | s.srcC
        elif mn.startswith("ds_read"):
            s.kind = "dsr"; s.wr = R[0]; s.rd = set().union(*R[1:])
        elif mn.startswith("ds_write"):
            s.kind = "dsw"; s.rd = allr
        elif mn.startswith("buffer_load") and " lds" in (" " + mods):
            s.kind = "dma"; s.rd = allr | {("m0", 0)}
        elif mn.startswith("buffer_load") or mn.startswith("global_load"):
            s.kind = "vld"; s.wr = R[0]; s.rd = set().union(*R[1:])
        elif mn.startswith("buffer_store"):
            s.kind = "vst"; s.rd = allr
            if "x3" in mn or "x4" in mn: s.data = R[0]
        elif mn.startswith("buffer_atomic"):
            s.kind = "vst"; s.rd = allr
        elif mn.startswith("v_"):
            s.kind = "trans" if mn.replace("_e64", "").replace("_e32", "") in TRANS else "valu"
            if mn.startswith("v_permlane") or mn.startswith("v_swap"):
                s.wr = allr; s.rd = allr
            elif mn.startswith("v_add_co") or mn.startswith("v_addc_co") or mn.startswith("v_sub_co"):
                s.wr = R[0] | R[1]; s.rd = set().union(*R[2:])
            else:
                s.wr = R[0]; s.rd = set().union(*R[1:]) if len(R) > 1 else set()
                if mn.startswith("v_fmac") or mn.startswith("v_dot2c") or "_dpp" in mn or mn.startswith("v_writelane"):
                    s.rd = s.rd | R[0]
        elif mn == "s_waitcnt": s.kind = "wait"
        elif mn == "s_barrier": s.kind = "bar"
        elif mn == "s_nop": s.kind = "nop"; s.arg = int(ops[0]) + 1
        elif mn.startswith("s_cbranch") or mn == "s_branch" or mn == "s_endpgm":
            s.kind = "br"
            if "vcc" in mn: s.rd = {("vcc", 0)}
            if "scc" in mn: s.rd = {("scc", 0)}
        elif mn.startswith("s_load") or mn.startswith("s_memtime") or mn.startswith("s_memrealtime"):
            s.kind = "smem"; s.wr = R[0]; s.rd = set().union(*R[1:]) if len(R) > 1 else set()
        elif mn.startswith("s_"):
            s.kind = "salu"
            if mn.startswith("s_cmp") or mn.startswith("s_bitcmp"):
                s.rd = allr; s.wr = {("scc", 0)}
            elif mn in ("s_setprio", "s_sleep"):
                pass
            else:
                s.wr = set(R[0]); s.rd = set().union(*R[1:]) if len(R) > 1 else set()
                if mn.startswith("s_cselect") or mn.startswith("s_addc") or mn.startswith("s_subb"): s.rd |= {("scc", 0)}
                if not (mn.startswith("s_mov") or mn.startswith("s_mul") or mn.startswith("s_cselect") or mn.startswith("s_getreg") or mn.startswith("s_getpc")):
                    s.wr |= {("scc", 0)}
                if "saveexec" in mn: s.wr |= {("exec", 0)}; s.rd |= {("exec", 0)}
        elif mn.endswith(":"):
            s.kind = "label"
        else:
            raise ValueError("unparsed: " + t)

    def cost(s):
        return {"trans": 2, "salu": 1, "dsw": 2, "pseudo": 0, "label": 0}.get(s.kind, 1)


def WAITVM(*tags): return I("", kind="pseudo", tag="waitvm", arg=set(tags))
def WAITVM0(): return I("", kind="pseudo", tag="waitvm0")
def WAITLG0(): return I("", kind="pseudo", tag="waitlg0")
def WAITLG(*tags): return I("", kind="pseudo", tag="waitlg", arg=set(tags))
def DELAY(n): return I("", kind="pseudo", tag="delay", arg=n)
def UNTIL(g): return I("", kind="pseudo", tag="until", arg=g)
def MARK(name): return I("", kind="pseudo", tag="mark", arg=name)
def RAW(text, states=1): return I(text, kind="raw", arg=states)
def GLUE(): return I("", kind="pseudo", tag="glue")


def L(text, tag=None):
    out = []
    for ln in text.split("\n"):
        ln = ln.strip()
        if ln and not ln.startswith(";"):
            out.append(I(ln, tag=tag))
    return out


def insert_waits(prog):
    vm = []; lg = []
    out = []
    for ins in prog:
        nv = None; nl = None
        def need(q, pred):
            for k in range(len(q) - 1, -1, -1):
                if pred(q[k]):
                    return len(q) - 1 - k
            return None
        if ins.kind == "pseudo":
            if ins.tag == "waitvm": nv = need(vm, lambda o: o[1] in ins.arg)
            elif ins.tag == "waitvm0": nv = 0 if vm else None
            elif ins.tag == "waitlg0": nl = 0 if lg else None
            elif ins.tag == "waitlg": nl = need(lg, lambda o: o[1] in ins.arg)
        elif ins.kind == "wait":
            m = re.search(r"vmcnt\((\d+)\)", ins.t)
            if m: k = int(m.group(1)); vm = vm[len(vm) - k:] if k < len(vm) else vm
            if m and int(m.group(1)) == 0: vm = []
            m = re.search(r"lgkmcnt\((\d+)\)", ins.t)
            if m: k = int(m.group(1)); lg = lg[len(lg) - k:] if k < len(lg) else lg
            if m and int(m.group(1)) == 0: lg = []
        elif ins.kind not in ("raw", "label"):
            touch = ins.rd | ins.wr
            nv = need(vm, lambda o: o[0] & touch)
            nl = need(lg, lambda o: o[0] & touch)
            if nl is not None and any(o[1] == "__smem" for o in lg): nl = 0
        if nv is not None or nl is not None:
            w = []
            if nv is not None:
                nv = min(nv, 63); w.append(f"vmcnt({nv})"); vm = vm[len(vm) - nv:] if nv else []
            if nl is not None:
                nl = min(nl, 15); w.append(f"lgkmcnt({nl})"); lg = lg[len(lg) - nl:] if nl else []
            if out and out[-1].kind == "wait" and out[-1].tag == "auto":
                prev = out.pop()
                d = dict(re.findall(r"(\w+)\((\d+)\)", prev.t))
                for k, v in re.findall(r"(\w+)\((\d+)\)", " ".join(w)):
                    d[k] = str(min(int(v), int(d.get(k, 99))))
                w = [f"{k}({v})" for k, v in d.items()]
            out.append(I("s_waitcnt " + " ".join(w), tag="auto"))
        if ins.kind == "pseudo":
            if ins.tag == "mark": out.append(ins)
            continue
        out.append(ins)
        if ins.kind in ("vld", "vst", "dma"):
            vm.append((ins.wr, ins.tag))
            assert len(vm) <= 63, "too many outstanding vmem ops at: " + ins.t
        elif ins.kind in ("dsr", "dsw"): lg.append((ins.wr, ins.tag))
        elif ins.kind == "smem": lg.append((ins.wr, "__smem"))
    return out


def _need_states(p, c):
    n = 0
    isv = lambda x: x.kind in ("valu", "trans")
    vreg = lambda S: {r for r in S if r[0] in "va" and r[0] != "vcc"}
    sreg = lambda S: {r for r in S if r[0] in ("s", "vcc")}
    if isv(p):
        pw = vreg(p.wr)
        if c.kind == "mfma" and pw & c.rd: n = max(n, 2)
        if isv(c) and pw & c.rd:
            if "_dpp" in c.mn or c.mn.startswith("v_permlane"): n = max(n, 2)
            if c.mn.startswith("v_readfirstlane") or c.mn.startswith("v_readlane"): n = max(n, 1)
            if p.kind == "trans" and c.kind != "trans": n = max(n, 1)
        if p.mn.startswith("v_dot2") and (pw & (c.rd | c.wr)):
            if not (c.mn == p.mn and not (pw & set().union(*[regs_of(o) for o in c.t.split(None, 1)[1].split(",")[1:3]]))):
                n = max(n, 3)
        sw = sreg(p.wr)
        if sw & c.rd:
            if isv(c): n = max(n, 2)
            if c.kind in ("vld", "vst", "dma"): n = max(n, 5)
            if c.kind == "salu": n = max(n, 1)
    if p.kind == "mfma":
        if c.kind == "mfma":
            if p.wr & c.srcAB: n = max(n, 8)
            if p.wr & c.srcC and p.wr != c.srcC: n = max(n, 6)
            if p.wr & c.wr and not (p.wr == c.srcC): n = max(n, 6)
        elif c.kind in ("valu", "trans", "vld", "vst", "dsr", "dsw", "dma"):
            if p.wr & (c.rd | c.wr): n = max(n, 8)
            if isv(c) and p.srcC & c.wr: n = max(n, 3)
    if p.kind == "salu" and ("m0", 0) in p.wr and c.kind == "dma": n = max(n, 1)
    if p.kind == "vst" and p.data and c.kind in ("valu", "trans", "mfma", "dsr", "vld") and p.data & c.wr: n = max(n, 2)
    return n


def insert_nops(prog):
    out = []
    win = []
    nn = 0
    for ins in prog:
        if ins.kind in ("pseudo", "label"):
            out.append(ins); continue
        need = 0; dist = 0
        for p, st in reversed(win):
            k = _need_states(p, ins)
            if k > dist: need = max(need, k - dist)
            dist += st
            if dist >= 9: break
        if need:
            nop = I(f"s_nop {need - 1}"); out.append(nop); win.append((nop, need)); nn += need
        out.append(ins)
        win.append((ins, ins.arg if ins.kind in ("nop", "raw") else 1))
        if len(win) > 12: win.pop(0)
    return out, nn


def finish(prog):
    p = insert_waits(prog)
    p, nn = insert_nops(p)
    return p, nn


def text_of(prog):
    return "\n".join(i.t if i.kind != "pseudo" else f"; ---- {i.arg}" for i in prog)


class Gap:
    __slots__ = ("pre", "mf", "s", "v", "used")
    def __init__(g, mf):
        g.pre = []; g.mf = mf; g.s = []; g.v = []; g.used = 0


class Track:
    def __init__(t):
        t.g = []
        t.tail = []
        t.bars = []
        t.notes = {}

    def add(t, mf):
        t.g.append(Gap(mf)); return len(t.g) - 1

    def put(t, k, inss):
        for x in inss:
            if k >= len(t.g): t.tail.append(x); continue
            g = t.g[k]
            if x.kind == "salu" and not g.s and not g.v: g.s.append(x)
            else: g.v.append(x); g.used += x.cost()

    def place(t, stream, start, dens=2):
        k = start
        glue = False
        for x in stream:
            if x.kind == "pseudo" and x.tag == "delay": k += x.arg; continue
            if x.kind == "pseudo" and x.tag == "until": k = max(k, x.arg); continue
            if x.kind == "pseudo" and x.tag == "glue": glue = True; continue
            if x.kind == "pseudo" and x.tag == "dens": dens = x.arg; continue
            if x.kind == "pseudo" and x.tag == "sync":
                nb = [b for b in t.bars if b > k]
                if nb and k < len(t.g):
                    t.g[nb[0]].pre.insert(0, WAITLG(*x.arg)); k = nb[0]
                else:
                    k = len(t.g); t.tail += [WAITLG(*x.arg), I("s_barrier")]
                continue
            if x.kind == "pseudo" and x.tag == "note":
                t.notes[x.arg] = k; continue
            while k < len(t.g) and not glue:
                g = t.g[k]
                c = 4 if x.kind == "mfma" else x.cost()
                if x.kind == "salu" and not g.s and not g.v: break
                if x.kind == "mfma":
                    if g.used <= dens: break
                elif g.used + c <= dens or (c > dens and g.used == 0): break
                k += 1
            glue = False
            if k >= len(t.g): t.tail.append(x); continue
            g = t.g[k]
            if x.kind == "salu" and not g.s and not g.v: g.s.append(x)
            else:
                g.v.append(x)
                g.used += (0 if x.kind == "mfma" else x.cost())
                if x.kind == "mfma": g.used = max(0, g.used - 2)
        return k

    def flat(t):
        out = []
        for g in t.g:
            out += g.pre; out.append(g.mf); out += g.s; out += g.v
        return out + t.tail


def DENS(n): return I("", kind="pseudo", tag="dens", arg=n)

def SYNC(*tags): return I("", kind="pseudo", tag="sync", arg=tags)
def NOTE(name): return I("", kind="pseudo", tag="note", arg=name)
```

```python
from fw import *
from layout import *

ONES = 0x3F803F80


def srd(s, ptr, nbytes):
    return L(f"s_mov_b32 s{s}, s{ptr}\ns_mov_b32 s{s+1}, s{ptr+1}\ns_mov_b32 s{s+2}, {nbytes}\ns_mov_b32 s{s+3}, 0x20000")


def divmod_s(q, r, x, d, tmp):
    magic = (1 << 32) // d + 1
    return L(f"s_mul_hi_u32 s{q}, s{x}, {magic}\ns_mul_i32 s{tmp}, s{q}, {d}\ns_sub_u32 s{r}, s{x}, s{tmp}")


def x_stats(XR, T, vones):
    p = []
    for k in range(8):
        for rbl in range(2):
            x = XR + rbl * 8 + k
            c0 = "0" if k == 0 else f"v{T+rbl}"
            c1 = "0" if k == 0 else f"v{T+2+rbl}"
            p += L(f"v_dot2_f32_bf16 v{T+rbl}, v{x}, v{vones}, {c0}\nv_dot2_f32_bf16 v{T+2+rbl}, v{x}, v{x}, {c1}")
    p += L(f"""v_permlane32_swap_b32 v{T}, v{T+1}
v_permlane32_swap_b32 v{T+2}, v{T+3}
v_add_f32 v{T}, v{T}, v{T+1}
v_add_f32 v{T+2}, v{T+2}, v{T+3}
v_permlane16_swap_b32 v{T}, v{T+2}
v_add_f32 v{T}, v{T}, v{T+2}""")
    return p


N_QKV, N_IN, N_O, N_OUT = 384, 448, 128, 224
WG_QKV, WG_IN, WG_O, WG_OUT, WG_SP, WG_X, WG_FL = 96, 112, 32, 56, 128, 64, 1
K0_GRID = WG_QKV + WG_X + WG_O + WG_IN + WG_SP + WG_OUT + WG_FL
K0_LDS = 65536


def strip(name, ptr, ld, K, ncb, wg0):
    p = []
    a = lambda t: p.extend(L(t))
    p += srd(8, ptr, K * ld)
    a(f"s_sub_u32 s20, s2, {wg0}\ns_lshl_b32 s20, s20, 2\ns_add_u32 s20, s20, s18")
    p += divmod_s(21, 22, 20, ncb, 23)
    a(f"""v_lshrrev_b32 v3, 3, v1
v_bfe_u32 v4, v1, 4, 2
v_lshlrev_b32 v4, 1, v4
v_and_b32 v5, 7, v1
v_xor_b32 v4, v4, v5
v_lshlrev_b32 v4, 4, v4
v_mul_u32_u24 v3, {ld}, v3
v_add_u32 v3, v3, v4
s_mul_i32 s24, s21, {128*ld}
s_lshl_b32 s25, s22, 7
s_add_u32 s24, s24, s25
s_lshl_b32 s26, s18, 14""")
    for t in range(16):
        a(f"s_add_u32 m0, s26, {t*1024}\ns_add_u32 s25, s24, {8*t*ld}")
        p.append(I("buffer_load_dwordx4 v3, s[8:11], s25 offen lds", tag=f"d{t//4}"))
    a("""v_lshrrev_b32 v4, 2, v1
v_lshlrev_b32 v4, 7, v4
v_and_b32 v5, 3, v1
v_lshlrev_b32 v5, 3, v5
v_add3_u32 v4, v4, v5, s26
v_bfe_u32 v5, v1, 3, 2""")
    for jj in range(4):
        a(f"v_xor_b32 v6, {jj}, v5\nv_lshl_add_u32 v{8+jj}, v6, 5, v4")
    cs = name in ("qkv", "in")
    if name == "qkv":
        a(f"""s_lshr_b32 s27, s22, 4
s_and_b32 s28, s22, 15
s_add_u32 s27, s27, 2
s_cmp_ge_u32 s27, 3
s_cselect_b32 s29, 3, 0
s_sub_u32 s27, s27, s29
s_mul_i32 s29, s28, 3
s_add_u32 s29, s29, s27
s_lshl_b32 s29, s29, 17
s_lshl_b32 s38, s21, 14
s_add_u32 s29, s29, s38
s_lshl_b32 s38, s21, 4
s_add_u32 s38, s38, s28
s_lshl_b32 s38, s38, 11
s_lshl_b32 s27, s27, 8
s_add_u32 s38, s38, s27""")
        for jj in range(4):
            a(f"s_add_u32 s{30+jj}, s29, {WQKV_F+jj*1024}\ns_add_u32 s{34+jj}, s38, {CSP+jj*64}")
        cstride = 4096
    elif name == "in":
        for jj in range(4):
            a(f"""s_lshl_b32 s27, s22, 2
s_add_u32 s27, s27, {jj}
s_cmp_ge_u32 s27, 112
s_cselect_b32 s28, 112, 0
s_cselect_b32 s40, 0, 1
s_sub_u32 s27, s27, s28""")
            p += divmod_s(28, 29, 27, 7, 38)
            a(f"""s_add_u32 s38, s29, 6
s_cmp_ge_u32 s38, 7
s_cselect_b32 s39, 7, 0
s_sub_u32 s38, s38, s39
s_bitcmp1_b32 s28, 0
s_cselect_b32 s29, s38, s29
s_lshl_b32 s38, s28, 1
s_add_u32 s38, s38, s40
s_lshl_b32 s38, s38, 5
s_lshl_b32 s39, s21, 2
s_add_u32 s38, s38, s39
s_mul_i32 s38, s38, 7168
s_lshl_b32 s39, s29, 10
s_add_u32 s38, s38, s39
s_add_u32 s{30+jj}, s38, {WIN_F}
s_lshl_b32 s38, s21, 4
s_add_u32 s38, s38, s28
s_lshl_b32 s38, s38, 11
s_mul_i32 s39, s40, {(CS_Z1-CS_Z2)*4}
s_add_u32 s38, s38, s39
s_lshl_b32 s39, s29, 6
s_add_u32 s38, s38, s39
s_add_u32 s{34+jj}, s38, {CSP+CS_Z2*4}""")
        cstride = 7168
    else:
        base, nkb = (WO_F, 32) if name == "o" else (WOUT_F, 56)
        a(f"s_mul_i32 s29, s22, {nkb*4096}\ns_lshl_b32 s38, s21, 14\ns_add_u32 s29, s29, s38")
        for jj in range(4):
            a(f"s_add_u32 s{30+jj}, s29, {base+jj*1024}")
        cstride = 4096
    if cs:
        for r in range(4): a(f"v_mov_b32 v{12+r}, {ONES}")
    for c in range(4):
        p.append(WAITVM(f"d{c}"))
        F = 32 + 16 * c
        for jj in range(4):
            for h in range(2):
                a(f"ds_read_b64_tr_b16 v[{F+4*jj+2*h}:{F+4*jj+2*h+1}], v{8+jj} offset:{c*4096+h*2048}")
        for jj in range(4):
            a(f"buffer_store_dwordx4 v[{F+4*jj}:{F+4*jj+3}], v2, s[4:7], s{30+jj} offen")
            a(f"s_add_u32 s{30+jj}, s{30+jj}, {cstride}")
            if cs:
                cin = "0" if c == 0 else f"v[{16+4*jj}:{19+4*jj}]"
                a(f"v_mfma_f32_16x16x32_bf16 v[{16+4*jj}:{19+4*jj}], v[12:15], v[{F+4*jj}:{F+4*jj+3}], {cin}")
    if cs:
        a(f"v_lshlrev_b32 v4, 2, v1\nv_mov_b32 v5, {OOB}\nv_cmp_gt_u32 vcc, 16, v1\nv_cndmask_b32 v4, v5, v4, vcc")
        for jj in range(4):
            a(f"buffer_store_dword v{16+4*jj}, v4, s[4:7], s{34+jj} offen")
    a("s_endpgm")
    return p


def sp_part(wg0):
    p = []
    a = lambda t: p.extend(L(t))
    p += srd(8, 60, 2048 * 4096)
    a(f"""s_sub_u32 s20, s2, {wg0}
s_lshl_b32 s20, s20, 2
s_add_u32 s20, s20, s18
s_lshr_b32 s21, s20, 3
s_and_b32 s22, s20, 7
v_bfe_u32 v3, v1, 2, 2
v_lshlrev_b32 v3, 3, v3
v_and_b32 v4, 3, v1
v_add_u32 v3, v3, v4
v_lshlrev_b32 v3, 12, v3
v_lshrrev_b32 v4, 4, v1
v_lshl_add_u32 v3, v4, 4, v3
s_lshl_b32 s23, s21, 17
s_lshl_b32 s24, s22, 9
s_add_u32 s24, s24, s23
s_add_u32 s25, s24, {4*4096}
s_lshl_b32 s26, s22, 14
s_add_u32 s26, s26, s23
s_add_u32 s26, s26, {WSP_F}""")
    for kb in range(8):
        for rbl in range(2):
            r = 8 + 8 * kb + 4 * rbl
            a(f"buffer_load_dwordx4 v[{r}:{r+3}], v3, s[8:11], s{24+rbl} offen offset:{kb*64}")
    for kb in range(8):
        for rbl in range(2):
            r = 8 + 8 * kb + 4 * rbl
            a(f"buffer_store_dwordx4 v[{r}:{r+3}], v2, s[4:7], s26 offen offset:{(kb&1)*2048+rbl*1024}")
        if kb & 1: a("s_add_u32 s26, s26, 4096")
    a("s_endpgm")
    return p


def x_part(wg0):
    p = []
    a = lambda t: p.extend(L(t))
    p += srd(8, 50, 2048 * 2048)
    a(f"""s_sub_u32 s20, s2, {wg0}
s_lshl_b32 s20, s20, 2
s_add_u32 s20, s20, s18
s_lshr_b32 s21, s20, 2
s_and_b32 s22, s20, 3
v_bfe_u32 v3, v1, 2, 2
v_lshlrev_b32 v3, 3, v3
v_and_b32 v4, 3, v1
v_add_u32 v3, v3, v4
v_lshlrev_b32 v3, 11, v3
v_lshrrev_b32 v4, 4, v1
v_lshl_add_u32 v3, v4, 3, v3
v_lshlrev_b32 v5, 2, v1
v_mov_b32 v6, {ONES}
s_lshl_b32 s23, s21, 16
s_lshl_b32 s24, s22, 9
s_add_u32 s24, s24, s23
s_add_u32 s25, s24, {4*2048}
s_lshl_b32 s26, s22, 14
s_add_u32 s26, s26, s23
s_add_u32 s26, s26, {LAY0+XFA}
s_lshl_b32 s27, s21, 12
s_lshl_b32 s28, s22, 10
s_add_u32 s27, s27, s28
s_add_u32 s27, s27, {LAY0+XSA}""")
    for t in range(4):
        for rbl in range(2):
            for j in range(4):
                r = 16 + 16 * t + 8 * rbl + 2 * j
                a(f"buffer_load_dwordx2 v[{r}:{r+1}], v3, s[8:11], s{24+rbl} offen offset:{t*128+j*32}")
    for t in range(4):
        for kbl in range(2):
            for rbl in range(2):
                r = 16 + 16 * t + 8 * rbl + 4 * kbl
                a(f"buffer_store_dwordx4 v[{r}:{r+3}], v2, s[4:7], s26 offen offset:{kbl*2048+rbl*1024}")
        a("s_add_u32 s26, s26, 4096")
        p += x_stats(16 + 16 * t, 8, 6)
        a(f"buffer_store_dword v8, v5, s[4:7], s27 offen offset:{t*256}")
    a("s_endpgm")
    return p


def fl_part():
    p = []
    a = lambda t: p.extend(L(t))
    a(f"v_lshlrev_b32 v3, 4, v0")
    for r in range(4): a(f"v_mov_b32 v{4+r}, 0\nv_mov_b32 v{8+r}, {ONES}")
    for l in range(2):
        for h in range(7):
            r = 8 if (l, h) == (0, 0) else 4
            a(f"s_mov_b32 s20, {LAY0+l*LSTRIDE+FL+h*4096}\nbuffer_store_dwordx4 v[{r}:{r+3}], v3, s[4:7], s20 offen")
    a("s_endpgm")
    return p


def build_k0(name):
    head = L(f"""s_cmp_ge_u32 s2, {K0_GRID}
s_cbranch_scc1 {name}_end
s_load_dwordx4 s[48:51], s[0:1], 0
s_load_dwordx4 s[52:55], s[0:1], 16
s_load_dwordx4 s[56:59], s[0:1], 32
s_load_dwordx4 s[64:67], s[0:1], 48
s_load_dwordx2 s[68:69], s[0:1], 80
v_and_b32 v1, 63, v0
v_lshrrev_b32 v2, 6, v0
s_nop 0
v_readfirstlane_b32 s18, v2
v_lshlrev_b32 v2, 4, v1
s_waitcnt lgkmcnt(0)
s_mov_b32 s60, s58
s_mov_b32 s61, s59
s_mov_b32 s62, s50
s_mov_b32 s63, s51
s_mov_b32 s50, s48
s_mov_b32 s51, s49""")
    head += srd(4, 68, WS_BYTES)
    parts = []
    w = 0
    for nm, cnt in (("qkv", WG_QKV), ("x", WG_X), ("o", WG_O), ("in", WG_IN), ("sp", WG_SP), ("out", WG_OUT), ("fl", WG_FL)):
        if nm == "qkv": body = strip("qkv", 62, 6144, 1024, 48, w)
        elif nm == "in": body = strip("in", 56, 7168, 1024, 56, w)
        elif nm == "o": body = strip("o", 52, 2048, 1024, 16, w)
        elif nm == "out": body = strip("out", 66, 2048, 1792, 16, w)
        elif nm == "sp": body = sp_part(w)
        elif nm == "x": body = x_part(w)
        else: body = fl_part()
        w += cnt
        parts.append((nm, w, body))
    txt = [text_of(finish(head)[0])]
    for nm, end, body in parts:
        txt.append(f"s_cmp_lt_u32 s2, {end}\ns_cbranch_scc1 {name}_{nm}")
    txt.append(f"{name}_end:\ns_endpgm")
    for nm, end, body in parts:
        txt.append(f"{name}_{nm}:")
        txt.append(text_of(finish(body)[0]))
    return "\n".join(txt)
```

```python
import struct, math
from fw import *
from layout import *
from k0 import srd, x_stats, ONES


def fbits(x): return "0x%08x" % struct.unpack("<I", struct.pack("<f", x))[0]


sM, sN, sWV, sLAYER = 16, 17, 18, 19
sRP, sWP, sW, sX = 21, 22, 23, 24
sB1, sB2, sB3, sB4, sB5 = 25, 26, 27, 28, 29
sT0, sT1, sT2, sT3 = 32, 33, 34, 35
sA, sB = 36, 37
sE6, sC1, sEPS, sCNT = 40, 43, 44, 47
sFLr, sFLc, sFLz, sXA, sYX, sSP, sXS, sKV, sZP, sZFo, sYo, sYs = range(48, 60)
sPI = 64
LAYER_REGS = [sB4, sFLr, sFLc, sFLz, sXA, sYX, sXS, sKV, sZP, sZFo, sYo, sYs]
(vL16, vRD, vD2, vSIGr, vSIGc, vPOL, vL4, vL8, vXW, vXPK, vXV, vCSf, vCSt, vSTw, vSTi, vSTg) = range(16)
vSEL = 16
vZPst, vZPld = 22, 23
vONES = 24
vZSst, vXB, vC0, vPT = 28, 29, 30, 31
XR, WF, A0, A1, BQ, NMR, TOK, TMP = 32, 48, 80, 136, 192, 200, 216, 220
vP0, vP1 = 254, 255
NB = 8
LOOK = 7
WS = "s[4:7]"
LOG2E = 1.4426950408889634
GC0 = -2.0 * LOG2E * math.sqrt(2.0 / math.pi)
GC1 = GC0 * 0.044715
MF = "v_mfma_f32_16x16x32_bf16"


def q4(r, p="v"): return f"{p}[{r}:{r+3}]"
def acc(base, rbl, j): return base + 4 * (2 * j + rbl)
def xa(kb, rbl): return 8 * (kb % 32) + 4 * rbl
def NM(rbl, r): return NMR + 8 * rbl + r
def RR(rbl, r): return NMR + 8 * rbl + 4 + r


class Cfg:
    TM = 4
    prof = False
    dens_k = 2
    dens_z2 = 30
    dens_z1 = 2
    xlook = 8
    def __init__(s, **kw):
        for k, v in kw.items(): setattr(s, k, v)


class Gen:
    def __init__(s, cfg, name):
        s.c = cfg; s.name = name; s.uid = 0; s.nstamp = 0
        st = []
        for seg, cnt, size, sc in ((sB1, 24, 16384, 0), (sB2, 8, 16384, 0), (sB3, 32, 14336, 0), (sB4, 32, 14336, 1), (sB5, 14, 16384, 0)):
            for k in range(cnt): st.append((seg if k == 0 else None, size, sc))
        s.stages = st
        s.NST = len(st)
        s.issued = 8

    def lab(s, x):
        s.uid += 1; return f"{s.name}_{x}{s.uid}"

    def stamp(s, nm):
        if not s.c.prof: return [MARK(nm)]
        k = s.nstamp; s.nstamp += 1
        s.stamp_names = getattr(s, "stamp_names", []) + [nm]
        return [MARK(nm)] + L(f"""s_memtime s[60:61]
s_memrealtime s[62:63]
s_waitcnt lgkmcnt(0)
v_writelane_b32 v{vP0}, s60, {k}
v_writelane_b32 v{vP1}, s62, {k}""")

    def prof_store(s):
        if not s.c.prof: return []
        return L(f"""s_lshl_b32 s{sT0}, s2, 2
s_add_u32 s{sT0}, s{sT0}, s{sWV}
s_lshl_b32 s{sT0}, s{sT0}, 1
s_add_u32 s{sT0}, s{sT0}, s{sLAYER}
s_lshl_b32 s{sT0}, s{sT0}, 9
s_add_u32 s{sT0}, s{sT0}, {PROF}
buffer_store_dword v{vP0}, v{vL4}, {WS}, s{sT0} offen
buffer_store_dword v{vP1}, v{vL4}, {WS}, s{sT0} offen offset:256""")

    def dma(s, u):
        seg, size, sc = s.stages[u % s.NST]
        p = []
        if seg is not None: p += L(f"s_mov_b32 s{sW}, s{seg}")
        p += L(f"s_mov_b32 m0, s{sWP}")
        for i in range(4):
            v = vD2 if (size == 14336 and i >= 2) else vL16
            p.append(I(f"buffer_load_dwordx4 v{v}, {WS}, s{sW} offen offset:{i*1024}{' sc1' if sc else ''} lds", tag=f"st{u}"))
        p += L(f"s_add_u32 s{sW}, s{sW}, {size}\ns_add_u32 s{sWP}, s{sWP}, {SLOT}\ns_and_b32 s{sWP}, s{sWP}, {RING-1}")
        return p

    def open_stage(s, t):
        return [WAITVM(f"st{t}"), I("s_barrier"), I(f"v_add_u32 v{vRD}, s{sRP}, v{vL16}")]

    def adv_rp(s):
        return L(f"s_add_u32 s{sRP}, s{sRP}, {SLOT}\ns_and_b32 s{sRP}, s{sRP}, {RING-1}")

    def signal(s, sreg, h, vsig, tags, st=sA):
        return [I(f"s_add_u32 s{st}, s{sreg}, {h*4096}"), WAITVM(*tags),
                I(f"buffer_store_dword v{vONES}, v{vsig}, {WS}, s{st} offen sc1")]

    def poll_issue(s, sreg, h, vpol, st=sA):
        return L(f"s_add_u32 s{st}, s{sreg}, {h*4096}\nbuffer_load_dword v{vPT}, v{vpol}, {WS}, s{st} offen sc1")

    def poll_check(s, vpol, st=sA):
        lp, ok = s.lab("poll"), s.lab("ok")
        slow = f"""s_cbranch_vccz {ok}
s_mov_b32 s{sCNT}, 0
{lp}:
buffer_load_dword v{vPT}, v{vpol}, {WS}, s{st} offen sc1
s_add_u32 s{sCNT}, s{sCNT}, 1
s_waitcnt vmcnt(0)
v_cmp_ne_u32 vcc, v{vONES}, v{vPT}
s_cmp_gt_u32 s{sCNT}, 400000
s_cbranch_scc1 {ok}
s_cbranch_vccnz {lp}
{ok}:"""
        return [I(f"v_cmp_ne_u32 vcc, v{vONES}, v{vPT}"), GLUE(), RAW(slow)]

    def xload(s, kb, sc=True, straddle=False):
        o = (kb & 1) * 2048
        f = " sc1" if sc else ""
        p = []
        if straddle:
            for half in range(2):
                for rbl in range(2):
                    r = xa(kb, rbl) + 2 * half
                    p += L(f"buffer_load_dwordx2 a[{r}:{r+1}], v{vL8}, {WS}, s{sX} offen offset:{o+half*1024+rbl*512}{f}")
        else:
            for rbl in range(2):
                p += L(f"buffer_load_dwordx4 {q4(xa(kb, rbl), 'a')}, v{vL16}, {WS}, s{sX} offen offset:{o+rbl*1024}{f}")
        if kb & 1: p += L(f"s_add_u32 s{sX}, s{sX}, 4096")
        return p

    def gather_stats(s, off, inv_n, tok, mul_r, T, delay=40):
        p = L(f"s_add_u32 s{sB}, s{sXS}, {off}")
        for t in range(4):
            p += L(f"buffer_load_dwordx4 {q4(T+4*t)}, v{vL16}, {WS}, s{sB} offen offset:{t*1024} sc1")
        p.append(DELAY(delay))
        for r in range(4): p += L(f"v_add_f32 v{T+r}, v{T+r}, v{T+4+r}")
        for r in range(4): p += L(f"v_add_f32 v{T+8+r}, v{T+8+r}, v{T+12+r}")
        for r in range(4): p += L(f"v_add_f32 v{T+r}, v{T+r}, v{T+8+r}")
        p += L(f"""v_permlane32_swap_b32 v{T}, v{T+2}
v_permlane32_swap_b32 v{T+1}, v{T+3}
v_add_f32 v{T}, v{T}, v{T+2}
v_add_f32 v{T+1}, v{T+1}, v{T+3}
v_permlane16_swap_b32 v{T}, v{T+1}
v_add_f32 v{T}, v{T}, v{T+1}
ds_write_b32 v{vSTw}, v{T}
ds_read2_b32 v[{T+4}:{T+5}], v{vSTi} offset0:0 offset1:16
ds_read2_b32 v[{T+6}:{T+7}], v{vSTi} offset0:32 offset1:48""")
        p.append(DELAY(8))
        k = fbits(inv_n)
        nk = fbits(-inv_n)
        p += L(f"""v_mul_f32 v{tok}, {nk}, v{T+4}
v_mul_f32 v{tok+2}, {nk}, v{T+6}
v_mul_f32 v{T+5}, {k}, v{T+5}
v_mul_f32 v{T+7}, {k}, v{T+7}
v_fma_f32 v{T+5}, -v{tok}, v{tok}, v{T+5}
v_fma_f32 v{T+7}, -v{tok+2}, v{tok+2}, v{T+7}
v_max_f32 v{T+5}, 0, v{T+5}
v_max_f32 v{T+7}, 0, v{T+7}
v_add_f32 v{T+5}, s{sEPS}, v{T+5}
v_add_f32 v{T+7}, s{sEPS}, v{T+7}
v_rsq_f32 v{tok+1}, v{T+5}
v_rsq_f32 v{tok+3}, v{T+7}""")
        if mul_r:
            p += L(f"v_mul_f32 v{tok}, v{tok}, v{tok+1}\nv_mul_f32 v{tok+2}, v{tok+2}, v{tok+3}")
        p += L(f"""ds_write2_b32 v{vSTi}, v{tok}, v{tok+1} offset0:64 offset1:80
ds_write2_b32 v{vSTi}, v{tok+2}, v{tok+3} offset0:96 offset1:112""")
        for q in range(4):
            p += L(f"ds_read_b128 {q4(NMR+4*q)}, v{vSTg} offset:{256+64*q}")
        p.append(DELAY(8))
        return p

    def phi4(s, a, nm, cs, rr, T):
        p = []
        for r in range(4): p += L(f"v_fma_f32 v{a+r}, v{nm[r]}, v{cs[r]}, v{a+r}")
        for r in range(4): p += L(f"v_fma_f32 v{a+r}, v{a+r}, v{rr[r]}, s{sE6}")
        for r in range(4): p += L(f"v_mul_f32 v{T+r}, {fbits(LOG2E)}, v{a+r}")
        for r in range(4): p += L(f"v_exp_f32_e64 v{T+r}, v{T+r} clamp\nv_max_f32 v{a+r}, s{sE6}, v{a+r}")
        for r in range(4): p += L(f"v_add_f32 v{a+r}, v{a+r}, v{T+r}")
        return p

    def gelu4(s, a, nm, cs, rr, T):
        p = []
        for r in range(4): p += L(f"v_fma_f32 v{a+r}, v{nm[r]}, v{cs[r]}, v{a+r}")
        for r in range(4): p += L(f"v_mul_f32 v{a+r}, v{a+r}, v{rr[r]}")
        for r in range(4): p += L(f"v_mul_f32 v{T+r}, v{a+r}, v{a+r}")
        for r in range(4): p += L(f"v_fma_f32 v{T+r}, v{T+r}, s{sC1}, v{vC0}")
        for r in range(4): p += L(f"v_mul_f32 v{T+r}, v{T+r}, v{a+r}")
        for r in range(4): p += L(f"v_exp_f32 v{T+r}, v{T+r}")
        for r in range(4): p += L(f"v_add_f32 v{T+r}, 1.0, v{T+r}")
        for r in range(4): p += L(f"v_rcp_f32 v{T+r}, v{T+r}")
        for r in range(4): p += L(f"v_mul_f32 v{a+r}, v{a+r}, v{T+r}")
        return p

    def cvt2(s, d, a):
        return L(f"v_cvt_pk_bf16_f32 v{d}, v{a}, v{a+1}\nv_cvt_pk_bf16_f32 v{d+1}, v{a+2}, v{a+3}")

    def track(s, blocks, t0):
        T = Track()
        frs = []
        t = t0 - 1
        info = {"blk": [], "step": {}, "bar": {}}
        for bi, b in enumerate(blocks):
            for kb in range(b["nkb"]):
                if kb % b["sps"] == 0: t += 1
                for j in range(b["nj"]):
                    frs.append((t, ((kb % b["sps"]) * b["nj"] + j) * 1024, bi, kb, j))
        def rd(q):
            return I(f"ds_read_b128 {q4(WF+4*(q % NB))}, v{vRD} offset:{frs[q][1]}")
        pre = s.open_stage(t0) + s.adv_rp() + [rd(q) for q in range(LOOK)]
        assert frs[LOOK][0] == t0
        for q, (st, off, bi, kb, j) in enumerate(frs):
            b = blocks[bi]
            if kb == 0 and j == 0: info["blk"].append(len(T.g))
            if j == 0: info["step"][(bi, kb)] = len(T.g)
            for x in range(2):
                rbl = x if j % 2 == 0 else 1 - x
                d = acc(b["acc"], rbl, j)
                w = q4(WF + 4 * (q % NB)); xx = q4(xa(kb + b.get("kb0", 0), rbl), "a")
                cin = q4(d)
                if kb == 0 and b.get("cin") is not None: cin = b["cin"](rbl, j)
                a_, b_ = (w, xx) if b["tok"] else (xx, w)
                k = T.add(I(f"{MF} {q4(d)}, {a_}, {b_}, {cin}"))
                if x == 0 and q + LOOK < len(frs):
                    nst = frs[q + LOOK][0]
                    if nst != frs[q + LOOK - 1][0]:
                        T.g[k].pre += s.open_stage(nst)
                        T.bars.append(k); info["bar"][nst] = k
                        info["adv"] = info.get("adv", []) + [k]
                    T.put(k, [rd(q + LOOK)])
        for k in info.get("adv", []):
            a = s.adv_rp()
            T.put(k + 1, a[:1]); T.put(k + 3, a[1:])
        info["last"] = t
        return pre, T, info

    def place_dma(s, T, u, k, step=4):
        assert u == s.issued
        s.issued += 1
        ins = s.dma(u)
        for x in ins:
            if x.kind == "dma":
                while k < len(T.g) and T.g[k].used >= 2: k += 1
                T.put(k, [x]); k += step
            else:
                while k < len(T.g) and (T.g[k].s or T.g[k].v): k += 1
                T.put(k, [x]); k += 1
        return k

    def auto_dma(s, T, info, t0, first, last, hold=None, k=0):
        for u in range(first, last + 1):
            if u - 6 > t0:
                if u - 6 not in info["bar"]: break
                k = max(k, info["bar"][u - 6] + 1)
            if hold: k = max(k, hold(u))
            if k >= len(T.g) - 24: break
            k = s.place_dma(T, u, k)
            if u in info["bar"]: assert k < info["bar"][u], (u, k, info["bar"][u])
        return k

    def flush_dma(s, upto):
        p = []
        while s.issued <= upto:
            p += s.dma(s.issued); s.issued += 1
        return p

    def place_x(s, T, info, bi, kb0, kb1, look, sc=True, strad=False, kofs=0):
        k = 0
        for kb in range(kb0, kb1):
            k = max(k, info["step"][(bi, kb - look)] + 1)
            for x in s.xload(kb + kofs, sc, strad and kb % 7 == 3):
                if x.kind == "salu":
                    while T.g[k].s or T.g[k].v: k += 1
                else:
                    while T.g[k].used >= 2: k += 1
                T.put(k, [x]); k += 1

    def x_out(s, final):
        p = []
        for rbl in range(2):
            for j in range(4): p += s.cvt2(XR + 8 * rbl + 2 * j, acc(A0, rbl, j))
        return p

    def x_publish(s, xoff, soff, flagh):
        p = L(f"s_lshl_b32 s{sT0}, s{sN}, 12\ns_add_u32 s{sT0}, s{sT0}, s{sXA}\ns_add_u32 s{sT0}, s{sT0}, {xoff}")
        for kbl in range(2):
            for rbl in range(2):
                p.append(I(f"buffer_store_dwordx4 {q4(XR+8*rbl+4*kbl)}, v{vL16}, {WS}, s{sT0} offen offset:{kbl*2048+rbl*1024} sc1", tag="xo"))
        p += x_stats(XR, TMP, vONES)
        p += L(f"s_lshl_b32 s{sT0}, s{sN}, 8\ns_add_u32 s{sT0}, s{sT0}, s{sXS}\ns_add_u32 s{sT0}, s{sT0}, {soff}")
        p.append(I(f"buffer_store_dword v{TMP}, v{vL4}, {WS}, s{sT0} offen sc1", tag="xo"))
        return p

    def res_init(s):
        p = []
        for rbl in range(2):
            for j in range(4):
                for h in range(2):
                    x = XR + 8 * rbl + 2 * j + h; d = acc(A0, rbl, j) + 2 * h
                    p += L(f"v_lshlrev_b32 v{d}, 16, v{x}\nv_and_b32 v{d+1}, 0xffff0000, v{x}")
        return p

    def start_x(s, sreg, off, h, n, sc=True, strad=False):
        p = s.poll_issue(sFLr, h, vPOL) + s.poll_check(vPOL)
        p += L(f"s_add_u32 s{sX}, s{sreg}, {off}")
        for kb in range(n): p += s.xload(kb, sc, strad and kb % 7 == 3)
        return p

    def phase1(s):
        c = s.c
        zero = lambda rbl, j: "0"
        blocks = [dict(nkb=32, nj=4, sps=4, tok=False, acc=A0, cin=zero),
                  dict(nkb=32, nj=4, sps=4, tok=False, acc=A1, cin=zero),
                  dict(nkb=32, nj=4, sps=4, tok=True, acc=A0, cin=zero)]
        pre, T, info = s.track(blocks, 0)
        p = s.stamp("P1 top") + pre + s.start_x(sXA, 0, H_X0, c.xlook) + s.stamp("P1 x issued")
        gV, gQ = info["blk"][1], info["blk"][2]
        s.place_x(T, info, 0, c.xlook, 32, c.xlook)
        s.auto_dma(T, info, 0, 8, 29)
        st = s.gather_stats(0, 1.0 / 1024, TOK, False, TMP, delay=60)
        CSK, CSV = TMP + 16, TMP + 20
        for j in range(4):
            st += L(f"ds_read_b32 v{CSK+j}, v{vCSf} offset:{(CS_K+16*j)*4}\nds_read_b32 v{CSV+j}, v{vCSf} offset:{(CS_V+16*j)*4}")
        e = T.place(st, 100)
        assert e < gV
        PKO = A0 + 32
        PK = [A0 + 32 + 4 * q for q in range(6)] + [A1 + 32, A1 + 36]
        VF = A1 + 40
        k = []
        for j in range(4):
            for rbl in range(2):
                a = acc(A0, rbl, j)
                k += s.phi4(a, [NM(rbl, r) for r in range(4)], [CSK + j] * 4, [RR(rbl, r) for r in range(4)], TMP + 4 * rbl)
                k += s.cvt2(PKO + 4 * j + 2 * rbl, a)
            k.append(I(f"ds_write_b128 v{vXW}, {q4(PKO+4*j)} offset:{j*1024}", tag="pk"))
        k += [NOTE("kdone"), SYNC("pk")]
        for w in range(4):
            for db in range(2):
                k.append(I(f"ds_read_b128 {q4(PK[2*w+db])}, v{vXPK} offset:{w*4096+db*1024}", tag="pkr"))
        k += [DELAY(6), SYNC("pkr")]
        e = T.place(k, gV + 6, c.dens_k)
        assert T.notes["kdone"] < gQ, (T.notes, gQ)
        v = [UNTIL(gQ + 6), DENS(8)]
        for j in range(4):
            for rbl in range(2):
                a = acc(A1, rbl, j)
                for r in range(4): v += L(f"v_fma_f32 v{a+r}, v{NM(rbl, r)}, v{CSV+j}, v{a+r}")
                for r in range(4): v += L(f"v_mul_f32 v{a+r}, v{a+r}, v{RR(rbl, r)}")
                v += s.cvt2(VF + 4 * j + 2 * rbl, a)
            v.append(I(f"ds_write_b128 v{vXW}, {q4(VF+4*j)} offset:{j*1024}", tag="vf"))
        v += [SYNC("vf"), DENS(2)]
        for w in range(4):
            v.append(I(f"ds_read_b128 {q4(VF+4*w)}, v{vXV} offset:{w*4096}", tag="vfr"))
        D, DZ = TMP, TMP + 8
        for w in range(4):
            for db in range(2):
                v += L(f"{MF} {q4(DZ+4*db)}, {q4(PK[2*w+db])}, {q4(vONES)}, {'0' if w == 0 else q4(DZ+4*db)}")
        for w in range(4):
            for db in range(2):
                v += L(f"{MF} {q4(D+4*db)}, {q4(PK[2*w+db])}, {q4(VF+4*w)}, {'0' if w == 0 else q4(D+4*db)}")
        v += [NOTE("vread")] + L(f"s_lshl_b32 s{sB}, s{sM}, 7\ns_add_u32 s{sB}, s{sB}, s{sZP}")
        for db in range(2):
            v.append(I(f"buffer_store_dwordx4 {q4(DZ+4*db)}, v{vZPst}, {WS}, s{sB} offen offset:{16*db} sc1", tag="kvo"))
        v += [DELAY(3)] + s.cvt2(TMP + 16, D) + s.cvt2(TMP + 18, D + 4)
        v += L(f"s_lshl_b32 s{sB}, s{sM}, 10\ns_add_u32 s{sB}, s{sB}, s{sKV}")
        v.append(I(f"buffer_store_dwordx4 {q4(TMP+16)}, v{vL16}, {WS}, s{sB} offen sc1", tag="kvo"))
        v += [DELAY(40)] + s.signal(sFLc, H_KV, vSIGc, ["kvo"])
        v += [DELAY(45)] + s.poll_issue(sFLc, H_KV, vPOL) + [DELAY(25)] + s.poll_check(vPOL)
        G = [A1 + 4 * q for q in range(14)] + [A0 + 32, A0 + 36]
        ZG = TMP + 16
        for db in range(2):
            v += L(f"buffer_load_dwordx4 {q4(ZG+4*db)}, v{vZPld}, {WS}, s{sZP} offen offset:{16*db} sc1")
        v += L(f"s_mov_b32 s{sB}, s{sKV}")
        for q in range(16):
            v += L(f"buffer_load_dwordx4 {q4(G[q])}, v{vL16}, {WS}, s{sB} offen offset:{(q&3)*1024} sc1")
            if q & 3 == 3: v += L(f"s_add_u32 s{sB}, s{sB}, 4096")
        v.append(DELAY(30))
        for sh in (8, 4, 2, 1):
            for r in range(8):
                v += L(f"v_add_f32_dpp v{ZG+r}, v{ZG+r}, v{ZG+r} row_ror:{sh} row_mask:0xf bank_mask:0xf")
        v += s.cvt2(TMP + 12, ZG) + s.cvt2(TMP + 14, ZG + 4)
        v += [NOTE("kvw"), I(f"ds_write_b128 v{vXV}, {q4(TMP+12)} offset:4096", tag="kvf")]
        for q in range(16):
            for db in range(2):
                sel = vSEL + 2 if db == 0 else vSEL
                v += L(f"{MF} {q4(D+4*db)}, {q4(sel)}, {q4(G[q])}, {'0' if q == 0 else q4(D+4*db)}")
        v += [DELAY(3)] + s.cvt2(TMP + 8, D) + s.cvt2(TMP + 10, D + 4)
        v.append(I(f"ds_write_b128 v{vXV}, {q4(TMP+8)}", tag="kvf"))
        v.append(SYNC("kvf"))
        KVF, ZFR = A1, A1 + 16
        for q in range(4): v += L(f"ds_read_b128 {q4(KVF+4*q)}, v{vXB} offset:{q*1024}")
        for h in range(2): v += L(f"ds_read_b128 {q4(ZFR+4*h)}, v{vXB} offset:{4096+h*2048}")
        T.place(v, e)
        assert any(T.notes["vread"] < b <= T.notes["kvw"] for b in T.bars), (T.notes, T.bars)
        s.info1 = (gV, gQ, len(T.g), dict(T.notes))
        p += T.flat() + s.stamp("P1 mfma done")
        CSQ, PQ = A0 + 32, A1 + 24
        for j in range(4): p += L(f"ds_read_b128 {q4(CSQ+4*j)}, v{vCSt} offset:{(CS_Q+16*j)*4}")
        for rbl in range(2):
            for j in range(4):
                a = acc(A0, rbl, j)
                p += s.phi4(a, [TOK + 2 * rbl] * 4, [CSQ + 4 * j + r for r in range(4)], [TOK + 2 * rbl + 1] * 4, TMP + 4 * (j & 1))
                p += s.cvt2(PQ + 8 * rbl + 2 * j, a)
        NUM = lambda rbl, h, eb: A0 + 4 * (4 * rbl + 2 * h + eb)
        DEN = lambda rbl, h: A1 + 40 + 4 * (2 * rbl + h)
        for rbl in range(2):
            for h in range(2):
                b = q4(PQ + 8 * rbl + 4 * h)
                p += L(f"{MF} {q4(DEN(rbl, h))}, {q4(ZFR+4*h)}, {b}, 0")
                for eb in range(2): p += L(f"{MF} {q4(NUM(rbl, h, eb))}, {q4(KVF+4*(2*h+eb))}, {b}, 0")
        p += L(f"s_lshl_b32 s{sT0}, s{sN}, 12\ns_add_u32 s{sT0}, s{sT0}, s{sXA}\ns_add_u32 s{sT0}, s{sT0}, {OF-XFA}")
        for rbl in range(2):
            for h in range(2): p += L(f"v_add_f32 v{DEN(rbl, h)}, s{sE6}, v{DEN(rbl, h)}")
        for rbl in range(2):
            for h in range(2): p += L(f"v_rcp_f32 v{DEN(rbl, h)}, v{DEN(rbl, h)}")
        for rbl in range(2):
            for h in range(2):
                o = TMP + 8 * rbl + 4 * h
                for eb in range(2):
                    a = NUM(rbl, h, eb)
                    for r in range(4): p += L(f"v_mul_f32 v{a+r}, v{a+r}, v{DEN(rbl, h)}")
                    p += s.cvt2(o + 2 * eb, a)
                p.append(I(f"buffer_store_dwordx4 {q4(o)}, v{vL16}, {WS}, s{sT0} offen offset:{h*2048+rbl*1024} sc1", tag="oo"))
        p += s.stamp("P1 o stored")
        p += s.signal(sFLr, H_O, vSIGr, ["oo"])
        return p

    def phase_res(s, nkb, t0, sreg, off, h, strad, nm):
        c = s.c
        blocks = [dict(nkb=nkb, nj=4, sps=4, tok=True, acc=A0, cin=None)]
        pre, T, info = s.track(blocks, t0)
        p = s.stamp(nm + " top") + pre + s.flush_dma(t0 + 7) + s.res_init()
        p += s.start_x(sreg, off, h, c.xlook, True, strad) + s.stamp(nm + " x issued")
        s.place_x(T, info, 0, c.xlook, nkb, c.xlook, True, strad)
        s.auto_dma(T, info, t0, t0 + 8, info["last"] + 6)
        p += T.flat() + s.stamp(nm + " mfma done")
        p += s.x_out(False)
        return p

    def phase34(s):
        c = s.c
        zero = lambda rbl, j: "0"
        bias = lambda rbl, j: q4(BQ + 4 * rbl)
        blocks = [dict(nkb=32, nj=7, sps=2, tok=False, acc=A0, cin=zero),
                  dict(nkb=32, nj=7, sps=2, tok=True, acc=A1, cin=zero),
                  dict(nkb=64, nj=7, sps=2, tok=True, acc=A0, cin=bias)]
        t0 = 32
        pre, T, info = s.track(blocks, t0)
        p = s.stamp("P3 top") + pre + s.flush_dma(t0 + 7)
        p += s.start_x(sXA, XFB - XFA, H_X1, c.xlook) + s.stamp("P3 x issued")
        g1, g4 = info["blk"][1], info["blk"][2]
        s.place_x(T, info, 0, c.xlook, 32, c.xlook)
        T.put(g1 + 1, L(f"s_mov_b32 s{sX}, s{sSP}"))
        k = g1 + 2
        for kb in range(64):
            key = (1, kb + 1) if kb + 1 < 32 else (2, kb + 1 - 32)
            k = max(k, info["step"][key] + 1)
            for x in s.xload(kb, False):
                if x.kind == "salu":
                    while T.g[k].s or T.g[k].v: k += 1
                else:
                    while T.g[k].used >= 2: k += 1
                T.put(k, [x]); k += 1
        kd = s.auto_dma(T, info, t0, t0 + 8, 63)
        assert s.issued == 64
        st = s.gather_stats(XSB - XSA, 1.0 / 1024, TOK, False, TMP, delay=60)
        CSZ = TMP + 24
        for j in range(7): st += L(f"ds_read_b32 v{CSZ+j}, v{vCSf} offset:{(CS_Z2+16*j)*4}")
        e = T.place(st, 250)
        assert e < g1
        SM = TMP + 8
        z = [DENS(c.dens_z2)]
        for j in range(7):
            for rbl in range(2):
                a = acc(A0, rbl, j)
                z += s.gelu4(a, [NM(rbl, r) for r in range(4)], [CSZ + j] * 4, [RR(rbl, r) for r in range(4)], TMP + 4 * rbl)
                for r in range(4):
                    s0, s1 = SM + 8 * rbl + r, SM + 8 * rbl + 4 + r
                    if j == 0: z += L(f"v_mov_b32 v{s0}, v{a+r}\nv_mul_f32 v{s1}, v{a+r}, v{a+r}")
                    else: z += L(f"v_add_f32 v{s0}, v{s0}, v{a+r}\nv_fmac_f32 v{s1}, v{a+r}, v{a+r}")
        for q in range(8): z += L(f"v_add_f32_dpp v{SM+q}, v{SM+q}, v{SM+q} row_ror:8 row_mask:0xf bank_mask:0x3")
        for q in range(8): z += L(f"v_add_f32_dpp v{SM+q}, v{SM+8+q}, v{SM+8+q} row_ror:8 row_mask:0xf bank_mask:0xc")
        for q in range(4): z += L(f"v_add_f32_dpp v{SM+8+q}, v{SM+q}, v{SM+q} row_half_mirror row_mask:0xf bank_mask:0x5")
        for q in range(4): z += L(f"v_add_f32_dpp v{SM+8+q}, v{SM+4+q}, v{SM+4+q} row_half_mirror row_mask:0xf bank_mask:0xa")
        for q in range(4): z += L(f"v_add_f32_dpp v{SM+8+q}, v{SM+8+q}, v{SM+8+q} quad_perm:[1,0,3,2] row_mask:0xf bank_mask:0xf")
        for q in range(4): z += L(f"v_add_f32_dpp v{SM+8+q}, v{SM+8+q}, v{SM+8+q} quad_perm:[2,3,0,1] row_mask:0xf bank_mask:0xf")
        z += L(f"s_lshl_b32 s{sB}, s{sN}, 8\ns_add_u32 s{sB}, s{sB}, s{sXS}\ns_add_u32 s{sB}, s{sB}, {ZS-XSA}")
        z.append(I(f"buffer_store_dwordx4 {q4(SM+8)}, v{vZSst}, {WS}, s{sB} offen sc1", tag="zso"))
        z += [DENS(2), DELAY(40)] + s.signal(sFLr, H_ZS, vSIGr, ["zso"])
        z += [DELAY(45)] + s.poll_issue(sFLr, H_ZS, vPOL) + [DELAY(25)] + s.poll_check(vPOL)
        z += s.gather_stats(ZS - XSA, 1.0 / 1792, TMP + 16, True, TMP, delay=30)
        z += [DENS(4), I(f"s_mov_b32 s{sB}, s{sZFo}")]
        for j in range(7):
            o = TMP + 4 * (j % 3)
            for rbl in range(2):
                a = acc(A0, rbl, j)
                for r in range(4): z += L(f"v_fma_f32 v{a+r}, v{a+r}, v{RR(rbl, r)}, v{NM(rbl, r)}")
                z += s.cvt2(o + 2 * rbl, a)
            z.append(I(f"buffer_store_dwordx4 {q4(o)}, v{vL16}, {WS}, s{sB} offen offset:{(j&3)*1024} sc1", tag="zo"))
            if j == 3: z += L(f"s_add_u32 s{sB}, s{sB}, 4096")
        z += [DENS(2), DELAY(45)] + s.signal(sFLc, H_Z, vSIGc, ["zo"])
        z += [DELAY(45)] + s.poll_issue(sFLz, H_Z, vL4) + [DELAY(25)] + s.poll_check(vL4) + [NOTE("z")]
        e = T.place(z, g1 + 6)
        gz = T.notes["z"] + 1
        s.info34 = (g1, gz, g4, info["bar"][64])
        assert gz < info["bar"][64] - 24, (gz, info["bar"][64])
        s.auto_dma(T, info, t0, 64, info["last"] + 6, hold=lambda u: gz, k=kd)
        z1 = []
        for j in range(7):
            cs = TMP + 16 + 4 * (j & 1)
            z1 += L(f"ds_read_b128 {q4(cs)}, v{vCSt} offset:{(CS_Z1+16*j)*4}") + [DELAY(4)]
            for rbl in range(2):
                z1 += s.gelu4(acc(A1, rbl, j), [TOK + 2 * rbl] * 4, [cs + r for r in range(4)], [TOK + 2 * rbl + 1] * 4, TMP + 4 * rbl)
        e = T.place(z1, g4 + 40, c.dens_z1)
        assert e < len(T.g)
        p += T.flat() + s.stamp("P4 mfma done")
        for pr in range(4):
            for rbl in range(2):
                o = TMP + 4 * ((2 * pr + rbl) % 4)
                for x in range(2 if pr < 3 else 1):
                    j = 2 * pr + x
                    a, b = acc(A0, rbl, j), acc(A1, rbl, j)
                    for r in range(4): p += L(f"v_mul_f32 v{a+r}, v{a+r}, v{b+r}")
                    p += s.cvt2(o + 2 * x, a)
                if pr < 3:
                    if pr == 2 and rbl == 0: p += L(f"s_add_u32 s{sT0}, s{sYo}, 4096")
                    so = sYo if pr < 2 else sT0
                    p.append(I(f"buffer_store_dwordx4 {q4(o)}, v{vL16}, {WS}, s{so} offen offset:{(pr&1)*2048+rbl*1024} sc1", tag="yo"))
                else:
                    p.append(I(f"buffer_store_dwordx2 v[{o}:{o+1}], v{vL8}, {WS}, s{sYs} offen offset:{rbl*512} sc1", tag="yo"))
        p += s.stamp("P4 y stored")
        p += s.signal(sFLr, H_Y, vSIGr, ["yo"])
        return p

    def prologue(s):
        c = s.c
        TM = c.TM; TN = 32 // TM; XM = 16 // TM
        lg = lambda x: int(math.log2(x))
        p = L(f"""s_cmp_ge_u32 s2, 256
s_cbranch_scc1 {s.name}_end
s_load_dwordx2 s[66:67], s[0:1], 48
s_load_dwordx2 s[68:69], s[0:1], 64
s_load_dwordx2 s[70:71], s[0:1], 80
v_lshrrev_b32 v1, 6, v0
v_and_b32 v31, 63, v0
v_readfirstlane_b32 s{sWV}, v1
v_lshlrev_b32 v30, 4, v0
s_and_b32 s{sT0}, s2, 7
s_lshr_b32 s{sT1}, s2, 3
s_and_b32 s{sM}, s{sT0}, {XM-1}
s_lshl_b32 s{sM}, s{sM}, {lg(TM)}
s_and_b32 s{sT2}, s{sT1}, {TM-1}
s_add_u32 s{sM}, s{sM}, s{sT2}
s_lshr_b32 s{sN}, s{sT0}, {lg(XM)}
s_lshl_b32 s{sN}, s{sN}, {lg(TN)}
s_lshr_b32 s{sT2}, s{sT1}, {lg(TM)}
s_add_u32 s{sN}, s{sN}, s{sT2}
v_lshlrev_b32 v{vL16}, 4, v31
s_lshl_b32 s{sWP}, s{sWV}, 12
s_mov_b32 s{sRP}, 0
s_mul_i32 s{sB1}, s{sN}, {3*131072}
s_add_u32 s{sB1}, s{sB1}, s{sWP}
s_waitcnt lgkmcnt(0)""")
        p += srd(4, 70, WS_BYTES)
        for u in range(8): p += s.dma(u)
        p += srd(8, 68, 2048 * 2048) + srd(12, 66, 4096)
        a = lambda t: p.extend(L(t))
        lane = 31; gI, gG = TMP + 20, TMP + 21
        a(f"""s_lshl_b32 s30, s{sM}, 2
s_add_u32 s30, s30, s{sWV}
s_lshl_b32 s31, s{sN}, 2
s_add_u32 s31, s31, s{sWV}
s_lshl_b32 s{sT0}, s{sWV}, 12
s_lshl_b32 s{sB2}, s{sN}, 17
s_add_u32 s{sB2}, s{sB2}, s{sT0}
s_add_u32 s{sB2}, s{sB2}, {WO_F}
s_mul_i32 s{sB3}, s{sN}, {64*7168}
s_add_u32 s{sB3}, s{sB3}, s{sT0}
s_add_u32 s{sB4}, s{sB3}, {LAY0+ZF}
s_add_u32 s{sB3}, s{sB3}, {WIN_F}
s_mul_i32 s{sB5}, s{sN}, {56*4096}
s_add_u32 s{sB5}, s{sB5}, s{sT0}
s_add_u32 s{sB5}, s{sB5}, {WOUT_F}
s_lshl_b32 s{sFLr}, s30, 6
s_add_u32 s{sFLr}, s{sFLr}, {LAY0+FL}
s_lshl_b32 s{sFLc}, s31, 6
s_add_u32 s{sFLc}, s{sFLc}, {LAY0+FL}
s_lshl_b32 s{sFLz}, s{sN}, 8
s_add_u32 s{sFLz}, s{sFLz}, {LAY0+FL}
s_lshl_b32 s{sXA}, s30, 16
s_add_u32 s{sXA}, s{sXA}, {LAY0+XFA}
s_mul_i32 s{sYX}, s30, {56*2048}
s_add_u32 s{sYX}, s{sYX}, {LAY0+YF}
s_lshl_b32 s{sSP}, s30, 17
s_add_u32 s{sSP}, s{sSP}, {WSP_F}
s_lshl_b32 s{sXS}, s30, 12
s_add_u32 s{sXS}, s{sXS}, {LAY0+XSA}
s_lshl_b32 s{sKV}, s31, 14
s_add_u32 s{sKV}, s{sKV}, {LAY0+KVP}
s_lshl_b32 s{sZP}, s31, 11
s_add_u32 s{sZP}, s{sZP}, {LAY0+ZP}
s_mul_i32 s{sZFo}, s{sN}, {64*7168}
s_mul_i32 s{sT1}, s30, 7168
s_add_u32 s{sZFo}, s{sZFo}, s{sT1}
s_add_u32 s{sZFo}, s{sZFo}, {LAY0+ZF}
s_lshr_b32 s{sT1}, s{sN}, 1
s_mul_i32 s{sT1}, s{sT1}, {7*2048}
s_add_u32 s{sT1}, s{sT1}, s{sYX}
s_and_b32 s{sT2}, s{sN}, 1
s_lshl_b32 s{sYo}, s{sT2}, 13
s_add_u32 s{sYo}, s{sYo}, s{sT1}
s_lshl_b32 s{sYs}, s{sT2}, 10
s_add_u32 s{sYs}, s{sYs}, s{sT1}
s_add_u32 s{sYs}, s{sYs}, {3*2048}
s_mov_b32 s{sE6}, {fbits(1e-6)}
s_mov_b32 s{sC1}, {fbits(GC1)}
s_mov_b32 s{sEPS}, {fbits(1e-5)}
s_mov_b32 s{sLAYER}, 0""")
        a(f"s_lshl_b32 s{sT1}, s{sN}, 11\ns_add_u32 s{sT1}, s{sT1}, {CSP}\nv_and_b32 v30, 2047, v30")
        for ks in range(8):
            a(f"buffer_load_dwordx4 {q4(A0+4*ks)}, v30, {WS}, s{sT1} offen\ns_add_u32 s{sT1}, s{sT1}, 32768")
        a(f"s_lshl_b32 s{sT1}, s{sN}, 12\ns_add_u32 s{sT1}, s{sT1}, s{sXA}")
        for kbl in range(2):
            for rbl in range(2):
                a(f"buffer_load_dwordx4 {q4(XR+8*rbl+4*kbl)}, v{vL16}, {WS}, s{sT1} offen offset:{kbl*2048+rbl*1024}")
        a(f"""v_and_b32 v{gI}, 15, v{lane}
v_lshrrev_b32 v{gG}, 4, v{lane}
v_bfe_u32 v{TMP}, v{lane}, 2, 2
v_lshlrev_b32 v{TMP}, 3, v{TMP}
v_and_b32 v{TMP+1}, 3, v{lane}
v_add_u32 v{TMP}, v{TMP}, v{TMP+1}
v_lshlrev_b32 v{TMP}, 1, v{TMP}
s_lshl_b32 s{sT1}, s30, 6
buffer_load_ushort v{BQ}, v{TMP}, s[12:15], s{sT1} offen
buffer_load_ushort v{BQ+4}, v{TMP}, s[12:15], s{sT1} offen offset:8
v_mov_b32 v{TMP+2}, {OOB}
s_cmp_eq_u32 s{sWV}, 3
s_cselect_b64 vcc, -1, 0
v_cndmask_b32 v{vD2}, v{vL16}, v{TMP+2}, vcc
v_cmp_eq_u32 vcc, 0, v{lane}
s_lshl_b32 s{sT1}, s{sN}, 2
v_mov_b32 v{TMP+3}, s{sT1}
v_cndmask_b32 v{vSIGr}, v{TMP+2}, v{TMP+3}, vcc
s_lshl_b32 s{sT1}, s{sM}, 2
v_mov_b32 v{TMP+3}, s{sT1}
v_cndmask_b32 v{vSIGc}, v{TMP+2}, v{TMP+3}, vcc
v_lshlrev_b32 v{vPOL}, 2, v{gI}
v_lshlrev_b32 v{vL4}, 2, v{lane}
v_lshlrev_b32 v{vL8}, 3, v{lane}
v_add_u32 v{vXB}, {XCH}, v{vL16}
v_add_u32 v{vXW}, s{sT0}, v{vXB}
s_lshr_b32 s{sT1}, s{sWV}, 1
s_lshl_b32 s{sT1}, s{sT1}, 11
v_add_u32 v{vXPK}, s{sT1}, v{vXB}
s_lshl_b32 s{sT1}, s{sWV}, 10
v_add_u32 v{vXV}, s{sT1}, v{vXB}
v_add_u32 v{vCSf}, {CS}, v{vPOL}
v_lshlrev_b32 v{TMP+3}, 4, v{gG}
v_add_u32 v{vCSt}, {CS}, v{TMP+3}
s_lshl_b32 s{sT1}, s{sWV}, 9
s_add_u32 s{sT1}, s{sT1}, {ST}
v_add_u32 v{vSTi}, s{sT1}, v{vPOL}
v_add_u32 v{vSTg}, s{sT1}, v{TMP+3}
v_lshlrev_b32 v{TMP+4}, 4, v{gI}
v_lshl_add_u32 v{TMP+4}, v{gG}, 2, v{TMP+4}
v_add_u32 v{vSTw}, s{sT1}, v{TMP+4}
v_lshlrev_b32 v{TMP+4}, 5, v{gG}
v_cmp_eq_u32 vcc, 0, v{gI}
v_cndmask_b32 v{vZPst}, v{TMP+2}, v{TMP+4}, vcc
v_lshl_add_u32 v{vZPld}, v{gI}, 7, v{TMP+4}
v_lshrrev_b32 v{TMP+4}, 2, v{gI}
v_lshl_add_u32 v{TMP+5}, v{TMP+4}, 6, v{TMP+3}
v_cmp_eq_u32 vcc, 0, v{TMP+1}
v_cndmask_b32 v{vZSst}, v{TMP+2}, v{TMP+5}, vcc
v_mov_b32 v{vSEL}, 0
v_mov_b32 v{vSEL+1}, 0
v_mov_b32 v{vSEL+4}, 0
v_mov_b32 v{vSEL+5}, 0
v_and_b32 v{TMP+5}, 1, v{lane}
v_lshlrev_b32 v{TMP+5}, 4, v{TMP+5}
v_mov_b32 v{TMP+6}, 0x3f80
v_lshlrev_b32 v{TMP+6}, v{TMP+5}, v{TMP+6}
v_cmp_eq_u32 vcc, v{TMP+4}, v{gG}
v_cndmask_b32 v{TMP+6}, 0, v{TMP+6}, vcc
v_cmp_gt_u32 vcc, 2, v{TMP+1}
v_cndmask_b32 v{vSEL+2}, 0, v{TMP+6}, vcc
v_cndmask_b32 v{vSEL+3}, v{TMP+6}, v{vSEL}, vcc""")
        for r in range(4): a(f"v_mov_b32 v{vONES+r}, {ONES}")
        for ks in range(1, 8):
            for r in range(4): a(f"v_add_f32 v{A0+r}, v{A0+r}, v{A0+4*ks+r}")
        a(f"v_add_u32 v30, {CS}, v30\nds_write_b128 v30, {q4(A0)}\nv_mov_b32 v{vC0}, {fbits(GC0)}")
        for rbl in range(2):
            a(f"v_lshlrev_b32 v{BQ+4*rbl}, 16, v{BQ+4*rbl}")
            for r in range(1, 4): a(f"v_mov_b32 v{BQ+4*rbl+r}, v{BQ+4*rbl}")
        if c.prof: a(f"v_mov_b32 v{vP0}, 0\nv_mov_b32 v{vP1}, 0")
        p += [WAITVM0(), WAITLG0()]
        return p

    def final_store(s):
        p = L(f"""v_lshrrev_b32 v{TMP}, 4, v{vL16}
v_bfe_u32 v{TMP+1}, v{TMP}, 2, 2
v_lshlrev_b32 v{TMP+1}, 3, v{TMP+1}
v_and_b32 v{TMP+2}, 3, v{TMP}
v_add_u32 v{TMP+1}, v{TMP+1}, v{TMP+2}
v_lshlrev_b32 v{TMP+1}, 11, v{TMP+1}
v_lshrrev_b32 v{TMP}, 4, v{TMP}
v_lshl_add_u32 v{TMP+1}, v{TMP}, 3, v{TMP+1}
s_lshl_b32 s{sT0}, s30, 16
s_lshl_b32 s{sT1}, s{sN}, 7
s_add_u32 s{sT0}, s{sT0}, s{sT1}
s_add_u32 s{sT1}, s{sT0}, {4*2048}""")
        for rbl in range(2):
            for j in range(4):
                r = XR + 8 * rbl + 2 * j
                p += L(f"buffer_store_dwordx2 v[{r}:{r+1}], v{TMP+1}, s[8:11], s{sT0+rbl} offen offset:{j*32}")
        return p

    def build(s):
        pro, n0 = finish(s.prologue())
        body = L(f"{s.name}_layer:")
        body += s.phase1()
        body += s.phase_res(32, 24, sXA, OF - XFA, H_O, False, "P2")
        body += s.x_publish(XFB - XFA, XSB - XSA, H_X1) + s.stamp("P2 stored") + s.signal(sFLr, H_X1, vSIGr, ["xo"])
        body += s.phase34()
        body += s.phase_res(56, 96, sYX, 0, H_Y, True, "P5")
        body += L(f"s_cmp_eq_u32 s{sLAYER}, 1\ns_cbranch_scc1 {s.name}_final")
        for r in LAYER_REGS: body += L(f"s_add_u32 s{r}, s{r}, {LSTRIDE}")
        body += s.x_publish(0, 0, H_X0) + s.stamp("P5 stored") + s.signal(sFLr, H_X0, vSIGr, ["xo"])
        body += [I("s_barrier")] + s.flush_dma(s.NST + 7)
        body += s.prof_store()
        body += L(f"s_add_u32 s{sLAYER}, s{sLAYER}, 1\ns_waitcnt vmcnt(0) lgkmcnt(0)\ns_branch {s.name}_layer")
        body, n1 = finish(body)
        fin = L(f"{s.name}_final:") + [RAW("s_nop 1")] + s.final_store()
        fin += s.stamp("end") + s.prof_store()
        fin += L(f"s_waitcnt vmcnt(0)\n{s.name}_end:\ns_endpgm")
        fin, n2 = finish(fin)
        s.stats = dict(nops=(n0, n1, n2), ninstr=len(pro) + len(body) + len(fin))
        return text_of(pro) + "\n" + text_of(body) + "\n" + text_of(fin)
```

```python
KB = 1024
MB = 1024 * 1024

WQKV_F = 0
WO_F = 6 * MB
WIN_F = 8 * MB
WOUT_F = 15 * MB
WSP_F = 19 * MB
CSP = 27 * MB
PROF = 200 * MB
LAY0 = 28 * MB
XFA = 0
OF = 4 * MB
XFB = 8 * MB
ZF = 12 * MB
YF = 19 * MB
KVP = 26 * MB
XSA = 27 * MB
XSB = XSA + 256 * KB
ZS = XSB + 256 * KB
ZP = ZS + 256 * KB
FL = ZP + 128 * KB
LSTRIDE = 28 * MB
WS_BYTES = 256 * MB
OOB = 0x7FFFFF00

H_X0, H_KV, H_O, H_X1, H_ZS, H_Z, H_Y = range(7)

NSLOT = 8
SLOT = 16 * KB
RING = NSLOT * SLOT
XCH = RING
CS = XCH + 16 * KB
ST = CS + 2 * KB
LDS_BYTES = ST + 2 * KB
CS_K, CS_V, CS_Q, CS_Z2, CS_Z1 = 0, 64, 128, 192, 304


def sigma(rb, i):
    return 32 * (rb >> 1) + 8 * (i >> 2) + 4 * (rb & 1) + (i & 3)


def fblock(n, j):
    return 7 * n + (j if n % 2 == 0 else (j + 1) % 7)
```

```python
import sys, os
sys.path.insert(0, os.path.dirname(os.path.abspath(__file__)))
from layout import *
import k0, k1

NAME = "interleave_layers__linear_attn_block__mixer_gmlp__prompt"

def kd(name, vgpr, accum, sgpr=102):
    return f""".section .rodata,"a"
.p2align 6
.amdhsa_kernel {name}
  .amdhsa_next_free_vgpr {vgpr}
  .amdhsa_next_free_sgpr {sgpr}
  .amdhsa_accum_offset {accum}
  .amdhsa_group_segment_fixed_size 0
  .amdhsa_kernarg_size 88
  .amdhsa_user_sgpr_count 2
  .amdhsa_user_sgpr_kernarg_segment_ptr 1
  .amdhsa_system_sgpr_workgroup_id_x 1
  .amdhsa_float_denorm_mode_32 3
.end_amdhsa_kernel
"""

def entry(name):
    return f".text\n.globl {name}\n.p2align 8\n.type {name},@function\n{name}:\n"

def build(extra_empty=0, **kw):
    cfg = k1.Cfg(**kw)
    g = k1.Gen(cfg, "main")
    main = g.build()
    prep = k0.build_k0("prep")
    ref = open(f"cdna_kernels/{NAME}.s.ref").read().split("\n") if os.path.exists(f"cdna_kernels/{NAME}.s.ref") else []
    head = [l for l in ref if l.startswith(";") and "@launch" not in l and "Override" not in l and "grid=ceil" not in l]
    head.append(f"; @launch kernel=prep_kernel grid=({k0.K0_GRID},1,1) block=(256,1,1) lds={k0.K0_LDS}")
    for i in range(extra_empty): head.append("; @launch kernel=empty_kernel grid=(256,1,1) block=(256,1,1) lds=0")
    head.append(f"; @launch kernel=main_kernel grid=(256,1,1) block=(256,1,1) lds={LDS_BYTES}")
    out = "\n".join(head) + '\n.amdgcn_target "amdgcn-amd-amdhsa--gfx950"\n'
    out += entry("prep_kernel") + prep + "\n" + entry("main_kernel") + main + "\n"
    if extra_empty: out += entry("empty_kernel") + "s_endpgm\n"
    out += kd("prep_kernel", 96, 96) + kd("main_kernel", 512, 256)
    if extra_empty: out += kd("empty_kernel", 8, 8)
    return out, g

if __name__ == "__main__":
    kw = {}
    dst = None
    for a in sys.argv[1:]:
        if "=" in a:
            k, v = a.split("="); kw[k] = eval(v)
        else: dst = a
    txt, g = build(**kw)
    open(dst or f"cdna_kernels/{NAME}.s", "w").write(txt)
    print(len(txt), g.stats, g.info1, g.info34)
    if kw.get("prof"): print(g.stamp_names)
```
